```python
import torch

def _softmax(x, axis=-1):
    return torch.softmax(x, dim=axis)
def _gelu(x):
    return torch.nn.functional.gelu(x, approximate="tanh")
def _silu(x):
    return torch.nn.functional.silu(x)
def _sigmoid(x):
    return torch.sigmoid(x)
def _layernorm(x, axis=-1, eps=1e-5):
    m = x.mean(dim=axis, keepdim=True)
    v = x.var(dim=axis, keepdim=True, unbiased=False)
    return (x - m) / torch.sqrt(v + eps)
def _scatter_add(tgt, idx, src, axis=0):
    return tgt.clone().index_add_(axis, idx, src)
def _segment_sum(src, seg, n):
    out = torch.zeros((n,) + src.shape[1:], dtype=src.dtype)
    return out.index_add_(0, seg, src)
def _pad(x, pw):
    flat = tuple(v for pair in reversed(pw) for v in pair)
    return torch.nn.functional.pad(x, flat)

kernel_name = 'sequential_preLN__softmax_full_mha__mixer_token_mlp__prompt'

def setup_inputs():

    _w = (lambda a: (lambda t: t.to(torch.bfloat16) if t.is_floating_point() else t)(torch.as_tensor(a)))
    def _A_setup():
        B, S, D = 1, 2048, 448
        return {
            "x": _w((lambda *s: torch.randn(*s, dtype=torch.bfloat16) * 0.05)(B, S, D)),
            "wqkv": _w((lambda *s: torch.randn(*s, dtype=torch.bfloat16) * 0.05)(D, 3 * D)),
            "wo": _w((lambda *s: torch.randn(*s, dtype=torch.bfloat16) * 0.05)(D, D)),
        }
    _A_in = _A_setup()

    def _B_setup():
        B, S, D, F = 1, 2048, 448, 1792
        return {
            "x": _w((lambda *s: torch.randn(*s, dtype=torch.bfloat16) * 0.05)(B, S, D)),
            "w1": _w((lambda *s: torch.randn(*s, dtype=torch.bfloat16) * 0.8)(S, F) * (S ** -0.5)),
            "b1": _w((lambda *s: torch.randn(*s, dtype=torch.bfloat16) * 12.8)(F) * 0.02),
            "w2": _w((lambda *s: torch.randn(*s, dtype=torch.bfloat16) * 0.2)(F, S) * (F ** -0.5)),
            "b2": _w((lambda *s: torch.randn(*s, dtype=torch.bfloat16) * 1.6)(S) * 0.02),
        }
    _B_in = _B_setup()

    return {
        "A_x": _A_in["x"],
        "A_wqkv": _A_in["wqkv"],
        "A_wo": _A_in["wo"],
        "B_x": _B_in["x"],
        "B_w1": _B_in["w1"],
        "B_b1": _B_in["b1"],
        "B_w2": _B_in["w2"],
        "B_b2": _B_in["b2"],
    }

def reference(A_x, A_wqkv, A_wo, B_x, B_w1, B_b1, B_w2, B_b2):
    def _A_ref(x, wqkv, wo):
        B, S, D = x.shape
        H = 16; Dh = D // H
        qkv = (lambda x, *d: x.permute(*d))((x @ wqkv).reshape(B, S, 3, H, Dh), 2, 0, 3, 1, 4)
        q, k, v = qkv[0], qkv[1], qkv[2]
        scale = Dh ** -0.5
        scores = torch.einsum("bhqd,bhkd->bhqk", q, k) * scale
        p = _softmax(scores, axis=-1)
        o = torch.einsum("bhqk,bhkd->bhqd", p, v)
        return (lambda x, *d: x.permute(*d))(o, 0, 2, 1, 3).reshape(B, S, D) @ wo

    def _B_ref(x, w1, b1, w2, b2):
        B, S, D = x.shape
        h = _layernorm(x, axis=-1)
        u = torch.einsum("bsd,sf->bdf", h, w1) + b1
        u = _gelu(u)
        y = torch.einsum("bdf,fs->bds", u, w2) + b2
        return (lambda x, *d: x.permute(*d))(y, 0, 2, 1)

    x = A_x
    h = x + _A_ref(_layernorm(x, axis=-1), A_wqkv, A_wo)
    h2 = h + _B_ref(_layernorm(h, axis=-1), B_w1, B_b1, B_w2, B_b2)
    return h2
```

```python
import sys
def kernel(body_init, body_loop, iters, grid, block, vgprs, lds=0, name="mb"):
    return f"""; @launch grid=({grid},1,1) block=({block},1,1) lds={lds}
.amdgcn_target "amdgcn-amd-amdhsa--gfx950"
.text
.globl mb_kernel
.p2align 8
.type mb_kernel,@function
mb_kernel:
    s_load_dwordx4 s[4:7], s[0:1], 0
    s_waitcnt lgkmcnt(0)
    s_mov_b32 s8, s4
    s_mov_b32 s9, s5
    s_mov_b32 s10, 0x4000000
    s_mov_b32 s11, 0x20000
    s_mov_b32 s12, s6
    s_mov_b32 s13, s7
    s_mov_b32 s14, 0x400000
    s_mov_b32 s15, 0x20000
{body_init}
    s_barrier
    s_memtime s[20:21]
    s_memrealtime s[22:23]
    s_waitcnt lgkmcnt(0)
    s_mov_b32 s16, {iters}
.p2align 6
L_loop:
{body_loop}
    s_sub_u32 s16, s16, 1
    s_cmp_lg_u32 s16, 0
    s_cbranch_scc1 L_loop
    s_waitcnt vmcnt(0) lgkmcnt(0)
    s_memtime s[24:25]
    s_memrealtime s[26:27]
    s_waitcnt lgkmcnt(0)
    s_sub_u32 s24, s24, s20
    s_sub_u32 s26, s26, s22
    v_lshrrev_b32 v1, 6, v0
    s_mul_i32 s3, s2, {block//64}
    v_add_u32 v1, s3, v1
    v_lshlrev_b32 v1, 4, v1
    v_mov_b32 v2, s24
    v_mov_b32 v3, s26
    v_and_b32 v4, 63, v0
    v_cmp_eq_u32 vcc, 0, v4
    s_and_saveexec_b64 s[30:31], vcc
    buffer_store_dwordx2 v[2:3], v1, s[12:15], 0 offen
    s_waitcnt vmcnt(0)
    s_endpgm
.section .rodata,"a"
.p2align 6
.amdhsa_kernel mb_kernel
  .amdhsa_next_free_vgpr {vgprs}
  .amdhsa_next_free_sgpr 96
  .amdhsa_accum_offset {min(256,(vgprs+3)//4*4)}
  .amdhsa_group_segment_fixed_size 0
  .amdhsa_kernarg_size 16
  .amdhsa_user_sgpr_count 2
  .amdhsa_user_sgpr_kernarg_segment_ptr 1
  .amdhsa_system_sgpr_workgroup_id_x 1
.end_amdhsa_kernel
"""
def init_rand(n0, n1):
    s = "    v_lshlrev_b32 v1, 4, v0\n"
    for r in range(n0, n1, 4):
        s += f"    buffer_load_dwordx4 v[{r}:{r+3}], v1, s[8:11], 0 offen offset:{(r*16)%4096}\n"
    s += "    s_waitcnt vmcnt(0)\n"
    return s

def pure(instr, n):
    return "\n".join(instr(i) for i in range(n))

if __name__ == "__main__":
    for w in (1, 2, 4):
        blk = 256 * w
        vg = 128
        open(f"exp_w{w}.s", "w").write(kernel(init_rand(8, 40), pure(lambda i: f"    v_exp_f32 v{40+i%32}, v{8+i%32}", 64), 2000, 256, blk, vg))
        open(f"add_w{w}.s", "w").write(kernel(init_rand(8, 40), pure(lambda i: f"    v_add_f32 v{40+i%32}, v{8+i%32}, v{8+(i+1)%32}", 64), 2000, 256, blk, vg))
        open(f"cvt_w{w}.s", "w").write(kernel(init_rand(8, 40), pure(lambda i: f"    v_cvt_pk_bf16_f32 v{40+i%32}, v{8+i%32}, v{8+(i+1)%32}", 64), 2000, 256, blk, vg))
        open(f"pkmul_w{w}.s", "w").write(kernel(init_rand(8, 40), pure(lambda i: f"    v_pk_mul_f32 v[{40+2*(i%16)}:{41+2*(i%16)}], v[{8+2*(i%16)}:{9+2*(i%16)}], v[{8+2*((i+1)%16)}:{9+2*((i+1)%16)}]", 64), 2000, 256, blk, vg))
        open(f"expadd_w{w}.s", "w").write(kernel(init_rand(8, 40), pure(lambda i: (f"    v_exp_f32 v{40+i%32}, v{8+i%32}" if i % 2 == 0 else f"    v_add_f32 v{72+i%32}, v{8+i%32}, v{8+(i+1)%32}"), 64), 2000, 256, blk, vg))
        def tile(Sa, Sb):
            L = []
            L.append(f"    v_mfma_f32_32x32x16_bf16 v[{Sb}:{Sb+15}], v[16:19], v[8:11], 0")
            for i in range(0, 4): L.append(f"    v_exp_f32 v{Sa+i}, v{Sa+i}")
            L.append(f"    v_cvt_pk_bf16_f32 v64, v{Sa}, v{Sa+1}")
            L.append(f"    v_cvt_pk_bf16_f32 v65, v{Sa+2}, v{Sa+3}")
            L.append(f"    v_mfma_f32_32x32x16_bf16 v[{Sb}:{Sb+15}], v[20:23], v[12:15], v[{Sb}:{Sb+15}]")
            for i in range(4, 8): L.append(f"    v_exp_f32 v{Sa+i}, v{Sa+i}")
            L.append(f"    v_cvt_pk_bf16_f32 v66, v{Sa+4}, v{Sa+5}")
            L.append(f"    v_cvt_pk_bf16_f32 v67, v{Sa+6}, v{Sa+7}")
            for i in range(8, 10): L.append(f"    v_exp_f32 v{Sa+i}, v{Sa+i}")
            L.append(f"    v_mfma_f32_32x32x16_bf16 v[80:95], v[24:27], v[64:67], v[80:95]")
            for i in range(10, 12): L.append(f"    v_exp_f32 v{Sa+i}, v{Sa+i}")
            L.append(f"    v_cvt_pk_bf16_f32 v68, v{Sa+8}, v{Sa+9}")
            L.append(f"    v_cvt_pk_bf16_f32 v69, v{Sa+10}, v{Sa+11}")
            for i in range(12, 16): L.append(f"    v_exp_f32 v{Sa+i}, v{Sa+i}")
            L.append(f"    v_cvt_pk_bf16_f32 v70, v{Sa+12}, v{Sa+13}")
            L.append(f"    v_cvt_pk_bf16_f32 v71, v{Sa+14}, v{Sa+15}")
            L.append(f"    s_nop 1")
            L.append(f"    v_mfma_f32_32x32x16_bf16 v[80:95], v[28:31], v[68:71], v[80:95]")
            return "\n".join(L)
        z = "\n".join(f"    v_mov_b32 v{r}, 0" for r in range(32, 112))
        open(f"att_w{w}.s", "w").write(kernel(init_rand(8, 32) + z, tile(32, 48) + "\n" + tile(48, 32), 1000, 256, blk, vg))
        import re
        t = "\n".join(l for l in (tile(32, 48) + "\n" + tile(48, 32)).split("\n") if "mfma" not in l and "s_nop" not in l)
        open(f"attnomfma_w{w}.s", "w").write(kernel(init_rand(8, 32) + z, t, 1000, 256, blk, vg))
        t = "\n".join(l for l in (tile(32, 48) + "\n" + tile(48, 32)).split("\n") if "mfma" in l)
        open(f"attonlymfma_w{w}.s", "w").write(kernel(init_rand(8, 32) + z, t, 1000, 256, blk, vg))
```

```python
from gen_att_mb import kernel, init_rand
names = []
def mk(name, lines, iters, rep=4):
    z = "\n".join(f"    v_mov_b32 v{r}, 0" for r in range(32, 128)) + "\n    v_mov_b32 v7, 0xdddddddd\n"
    open(name, "w").write(kernel(init_rand(8, 32) + z, "\n".join(lines * rep), iters, 256, 256, 512)); names.append(name)
E = lambda r: f"    v_exp_f32 v{r}, v{r}"
C = lambda d, r: f"    v_cvt_pk_bf16_f32 v{d}, v{r}, v{r+1}"
def tile(Sa, Sb, sparse):
    QK0 = f"    v_mfma_f32_32x32x16_bf16 v[{Sb}:{Sb+15}], v[16:19], v[8:11], 0"
    QK1 = f"    v_mfma_f32_32x32x16_bf16 v[{Sb}:{Sb+15}], v[20:23], v[12:15], v[{Sb}:{Sb+15}]"
    if not sparse:
        PV = lambda t: f"    v_mfma_f32_32x32x16_bf16 v[96:111], v[{24+4*t}:{27+4*t}], v[{80+4*t}:{83+4*t}], v[96:111]"
        g = lambda k: [E(Sa + 4 * k + i) for i in range(4)] + [C(80 + 2 * k, Sa + 4 * k), C(81 + 2 * k, Sa + 4 * k + 2)]
        return [QK0] + g(0) + [PV(1)] + g(1) + [QK1] + g(2) + [PV(0)] + g(3)
    PV = lambda t: f"    v_smfmac_f32_32x32x32_bf16 v[96:111], v[{24+4*t}:{27+4*t}], v[{80+8*t}:{87+8*t}], v7"
    g = lambda k: [f"    v_exp_f32 v{80+4*k+i}, v{Sa+4*k+i}" for i in range(4)]
    return [QK0] + g(0) + [QK1] + g(1)[:2] + [PV(1)] + g(1)[2:] + g(2) + [PV(0)] + g(3) if sparse == 2 else [QK0] + g(0) + [PV(1)] + g(1) + [QK1] + g(2) + [PV(0)] + g(3)
for r in range(2):
    for sp in (0, 1, 2):
        mk(f"sm{sp}_short.s", tile(32, 48, sp) + tile(48, 32, sp), 8)
mk("smonly.s", ["    v_smfmac_f32_32x32x32_bf16 v[96:111], v[24:27], v[8:15], v7", "    v_smfmac_f32_32x32x32_bf16 v[64:79], v[28:31], v[16:23], v7"] * 2, 20)
mk("donly.s", ["    v_mfma_f32_32x32x16_bf16 v[96:111], v[24:27], v[8:11], v[96:111]", "    v_mfma_f32_32x32x16_bf16 v[64:79], v[28:31], v[16:19], v[64:79]"] * 2, 20)
print(" ".join(names))
```
